```python
import torch

def _softmax(x, axis=-1):
    return torch.softmax(x, dim=axis)

def _gelu(x):
    return torch.nn.functional.gelu(x, approximate='tanh')

def _silu(x):
    return torch.nn.functional.silu(x)

def _sigmoid(x):
    return torch.sigmoid(x)

def _layernorm(x, axis=-1, eps=1e-05):
    m = x.mean(dim=axis, keepdim=True)
    v = x.var(dim=axis, keepdim=True, unbiased=False)
    return (x - m) / torch.sqrt(v + eps)

def _scatter_add(tgt, idx, src, axis=0):
    return tgt.clone().index_add_(axis, idx, src)

def _segment_sum(src, seg, n):
    out = torch.zeros((n,) + src.shape[1:], dtype=src.dtype)
    return out.index_add_(0, seg, src)

def _pad(x, pw):
    flat = tuple((v for pair in reversed(pw) for v in pair))
    return torch.nn.functional.pad(x, flat)
kernel_name = 'adaLN_cond__linear_kernel_hedgehog__dense_activation_squared_relu__prompt'

def setup_inputs():

    _w = lambda a: (lambda t: t.to(torch.bfloat16) if t.is_floating_point() else t)(torch.as_tensor(a))

    def _A_setup():
        B, S, D, H = (1, 2048, 1024, 32)
        Dh = D // H
        return {'x': _w((lambda *s: torch.randn(*s, dtype=torch.bfloat16) * 0.05)(B, S, D)), 'wqkv': _w((lambda *s: torch.randn(*s, dtype=torch.bfloat16) * 0.4)(D, 3 * D)), 'w_phi': _w((lambda *s: torch.randn(*s, dtype=torch.bfloat16) * 0.4)(H, Dh, Dh) * Dh ** (-0.5)), 'wo': _w((lambda *s: torch.randn(*s, dtype=torch.bfloat16) * 0.05)(D, D))}
    _A_in = _A_setup()

    def _B_setup():
        B, S, D, F = (1, 2048, 1024, 3584)
        return {'x': _w((lambda *s: torch.randn(*s, dtype=torch.bfloat16) * 0.05)(B, S, D)), 'w1': _w((lambda *s: torch.randn(*s, dtype=torch.bfloat16) * 0.05)(D, F)), 'b1': _w((lambda *s: torch.randn(*s, dtype=torch.bfloat16) * 0.4)(F)), 'w2': _w((lambda *s: torch.randn(*s, dtype=torch.bfloat16) * 0.05)(F, D)), 'b2': _w((lambda *s: torch.randn(*s, dtype=torch.bfloat16) * 6.4)(D))}
    _B_in = _B_setup()
    return {'A_x': _A_in['x'], 'A_wqkv': _A_in['wqkv'], 'A_w_phi': _A_in['w_phi'], 'A_wo': _A_in['wo'], 'B_x': _B_in['x'], 'B_w1': _B_in['w1'], 'B_b1': _B_in['b1'], 'B_w2': _B_in['w2'], 'B_b2': _B_in['b2'], 'c': _w((lambda *s: torch.randn(*s, dtype=torch.bfloat16) * 0.1)(1, 1024) * 8.0), 'w_mod': _w((lambda *s: torch.randn(*s, dtype=torch.bfloat16) * 0.1)(1024, 6 * 1024) * 1024 ** (-0.5) * 8.0)}

def reference(A_x, A_wqkv, A_w_phi, A_wo, B_x, B_w1, B_b1, B_w2, B_b2, c, w_mod):

    def _A_ref(x, wqkv, w_phi, wo):
        B, S, D = x.shape
        H = 32
        Dh = D // H
        qkv = (lambda x, *d: x.permute(*d))((x @ wqkv).reshape(B, S, 3, H, Dh), 2, 0, 3, 1, 4)
        q, k, v = (qkv[0], qkv[1], qkv[2])
        pq = torch.einsum('bhsd,hdf->bhsf', q, w_phi)
        pk = torch.einsum('bhsd,hdf->bhsf', k, w_phi)
        phi_q = torch.concatenate([_softmax(pq, axis=-1), _softmax(-pq, axis=-1)], axis=-1)
        phi_k = torch.concatenate([_softmax(pk, axis=-1), _softmax(-pk, axis=-1)], axis=-1)
        kv = torch.einsum('bhsf,bhsd->bhfd', phi_k, v)
        z = torch.einsum('bhsf->bhf', phi_k)
        num = torch.einsum('bhqf,bhfd->bhqd', phi_q, kv)
        den = torch.einsum('bhqf,bhf->bhq', phi_q, z)[..., None] + 1e-06
        o = num / den
        return (lambda x, *d: x.permute(*d))(o, 0, 2, 1, 3).reshape(B, S, D) @ wo

    def _B_ref(x, w1, b1, w2, b2):
        h = torch.einsum('bsd,df->bsf', x, w1) + b1
        zero = torch.zeros_like(h)
        r = torch.where(h > zero, h, zero)
        h = r * r
        out = torch.einsum('bsf,fd->bsd', h, w2) + b2
        return out
    x = A_x
    mod = (_silu(c) @ w_mod).reshape(c.shape[0], 6, 1, -1)
    sa, ca, ga, sb, cb, gb = (mod[:, 0].clone(), mod[:, 1].clone(), mod[:, 2].clone(), mod[:, 3].clone(), mod[:, 4].clone(), mod[:, 5].clone())
    h = _layernorm(x, axis=-1) * (1 + ca) + sa
    x = x + ga * _A_ref(h, A_wqkv, A_w_phi, A_wo)
    h = _layernorm(x, axis=-1) * (1 + cb) + sb
    x = x + gb * _B_ref(h, B_w1, B_b1, B_w2, B_b2)
    return x
```

```python
class K:
    def __init__(self):
        self.lines = []
        self.nlab = 0
    def __call__(self, s):
        for l in s.split("\n"):
            self.lines.append("    " + l.strip() if l.strip() and not l.strip().endswith(":") else l.strip())
    def label(self, name): self.lines.append(name + ":")
    def newlabel(self, p="L"):
        self.nlab += 1
        return "%s_%d" % (p, self.nlab)
    def text(self): return "\n".join(self.lines) + "\n"
def v(i, n=1): return "v%d" % i if n == 1 else "v[%d:%d]" % (i, i + n - 1)
def a(i, n=1): return "a%d" % i if n == 1 else "a[%d:%d]" % (i, i + n - 1)
def s(i, n=1): return "s%d" % i if n == 1 else "s[%d:%d]" % (i, i + n - 1)
def kernel_head(name):
    return ".text\n.globl %s\n.p2align 8\n.type %s,@function\n%s:\n" % (name, name, name)
def kernel_desc(name, vgpr, sgpr, accum):
    return """.section .rodata,"a"
.p2align 6
.amdhsa_kernel %s
  .amdhsa_next_free_vgpr %d
  .amdhsa_next_free_sgpr %d
  .amdhsa_accum_offset %d
  .amdhsa_group_segment_fixed_size 0
  .amdhsa_kernarg_size 112
  .amdhsa_user_sgpr_count 2
  .amdhsa_user_sgpr_kernarg_segment_ptr 1
  .amdhsa_system_sgpr_workgroup_id_x 1
.end_amdhsa_kernel
""" % (name, vgpr, sgpr, accum)
```

```python
from asmgen import *

class Op:
    __slots__ = ("kind", "text", "tag", "keep")
    def __init__(self, kind, text=None, tag=None, keep=False):
        self.kind, self.text, self.tag, self.keep = kind, text, tag, keep

class Core:
    def __init__(self, k, name, NT, nstages, R, XR, NI, slot_bytes, PD,
                 acc, wf, xr, v_xoff, s_xsrd, s_xk, v_woff, s_wsrd, s_wk, w_stage_stride,
                 v_rd, v_rdbase, rd_off, s_a, s_b, s_c, s_wv, lds_base, s_cnt, swapped=None, KS=4, waitevery=1,
                 extra=None, xflags="", spread=1.0, abl=(), phase=0):
        self.__dict__.update(locals())
        self.WD = PD + 1 if PD != 2 else 4
        if swapped is None: self.swapped = [True] * NT
        self.U = XR // KS
        assert XR % KS == 0 and nstages % self.U == 0
        assert XR % self.WD == 0

    def dma(self, i):
        return "buffer_load_dwordx4 %s, %s, %s offen offset:%d lds" % (v(self.v_woff[i]), s(self.s_wsrd, 4), s(self.s_wk), (i % 4) * 1024)
    def xload(self, slot, jj):
        return "buffer_load_dwordx4 %s, %s, %s, %s offen offset:%d%s" % (a(self.xr + 4 * slot, 4), v(self.v_xoff), s(self.s_xsrd, 4), s(self.s_xk), jj * 1024, self.xflags)
    def rd(self, buf, j, t, q):
        reg, off = self.rd_off(j, t, q)
        return "ds_read_b64_tr_b16 %s, %s offset:%d" % (a(self.wf + (buf * self.NT + t) * 4 + 2 * q, 2), v(self.v_rd[reg]), off)
    def mfma(self, buf, t, xslot):
        w = a(self.wf + (buf * self.NT + t) * 4, 4); x = a(self.xr + 4 * xslot, 4); d = v(self.acc + 16 * t, 16)
        A, B = (w, x) if self.swapped[t] else (x, w)
        return "v_mfma_f32_32x32x16_bf16 %s, %s, %s, %s" % (d, A, B, d)

    def groups(self, st):
        tgt = st - 1 + self.R
        kp = tgt >= 0
        G = []
        G.append([Op("s", "s_add_u32 m0, %s, %s" % (s(self.s_a), s(self.s_wv)), keep=kp),
                  Op("s", "s_add_u32 %s, %s, %s" % (s(self.s_wv + 1), s(self.s_a), s(self.s_wv)), keep=kp)])
        for i in range(self.NI):
            g = [Op("vm", self.dma(i), ("dma", tgt), keep=kp)]
            if i % 4 == 3 and i + 1 < self.NI:
                g.append(Op("s", "s_add_u32 m0, %s, %d" % (s(self.s_wv + 1), (i + 1) * 1024), keep=kp))
                g.append(Op("pronop", "s_nop 0", keep=kp))
            if i == 0:
                g.append(Op("s", "s_mov_b32 %s, %s" % (s(self.s_a), s(self.s_b)), keep=kp))
            if i == min(1, self.NI - 1):
                g.append(Op("s", "s_mov_b32 %s, %s" % (s(self.s_b), s(self.s_c)), keep=kp))
            if i == self.NI - 1:
                g.append(Op("s", "s_add_u32 %s, %s, %d" % (s(self.s_wk), s(self.s_wk), self.w_stage_stride), keep=kp))
            G.append(g)
        G.append([Op("s", "s_add_u32 %s, %s, %d" % (s(self.s_c), s(self.s_c), self.slot_bytes), keep=kp),
                  Op("s", "s_cmp_eq_u32 %s, %d" % (s(self.s_c), self.lds_base + self.R * self.slot_bytes), keep=kp),
                  Op("s", "s_cselect_b32 %s, %d, %s" % (s(self.s_c), self.lds_base, s(self.s_c)), keep=kp)])
        return G

    def emit(self):
        k = self.k; NT, KS, PD, WD, R, U, XR = self.NT, self.KS, self.PD, self.WD, self.R, self.U, self.XR
        st0 = min(1 - R, -U - 1)
        nslots = KS * NT
        bodies = {}
        carry = []; slot = 0; sched = {}
        for st in range(st0, self.nstages):
            out = []
            for j in range(KS):
                g = st * KS + j
                if j == KS - PD:
                    assert not carry
                    out.append(Op("waitvm", tag=("dma", st + 1)))
                    out.append(Op("bar", "s_barrier"))
                    for r in range(len(self.v_rd)):
                        out.append(Op("v", "v_add_u32 %s, %s, %s" % (v(self.v_rd[r]), s(self.s_c), v(self.v_rdbase[r]))))
                    carry = self.groups(st); slot = 0
                    ng = len(carry)
                    span = max(ng, int(nslots * self.spread) - 1)
                    sched = {}
                    for i in range(ng):
                        sched.setdefault(min(nslots - 1, (i * span) // ng + (self.phase if i > 0 else 0)), []).append(i)
                    carry = {i: carry[i] for i in range(ng)}
                gn = g + PD; jn = gn % KS
                for t in range(NT):
                    if t == 0: out.append(Op("waitvm", tag=("x", g)))
                    if t % self.waitevery == 0:
                        out.append(Op("waitlds", tag=("w", g, min(NT - 1, t + self.waitevery - 1), 1)))
                    out.append(Op("mfma", self.mfma(g % WD, t, g % XR)))
                    for q in range(2):
                        out.append(Op("lds", self.rd(gn % WD, jn, t, q), ("w", gn, t, q), keep=gn >= 0))
                    xp = self.phase * 2 if self.phase else 0
                    if t == (NT - 1 + xp) % NT:
                        gx = g if xp == 0 else g - 1
                        out.append(Op("vm", self.xload(gx % XR, gx % KS), ("x", gx + XR), keep=gx + XR >= 0))
                        if gx % KS == KS - 1:
                            out.append(Op("s", "s_add_u32 %s, %s, %d" % (s(self.s_xk), s(self.s_xk), KS * 1024), keep=gx + XR >= 0))
                    if carry:
                        for i in sched.get(slot, []):
                            out.extend(carry.pop(i))
                    slot += 1
            bodies[st] = out
        pro_vm = []; pro_lds = []
        for st in range(st0, 0):
            for o in bodies[st]:
                if not o.keep: continue
                (pro_lds if o.kind == "lds" else pro_vm).append(o)
        seq = [(o, -1, i) for i, o in enumerate(pro_vm)] + [(Op("waitvm", tag=("dma", 0)), -1, "w")] + [(o, -1, None) for o in pro_lds]
        for st in range(self.nstages):
            seq += [(o, st, p) for p, o in enumerate(bodies[st])]
        vm_idx = {}; lds_idx = {}; nvm = nl = 0; waits = {}; maxout = 0
        for o, st, p in seq:
            if o.kind == "vm": nvm += 1; vm_idx[o.tag] = nvm
            elif o.kind == "lds": nl += 1; lds_idx[o.tag] = nl
            elif o.kind == "waitvm":
                waits[(st, p)] = nvm - vm_idx[o.tag]
            elif o.kind == "waitlds": waits[(st, p)] = nl - lds_idx[o.tag]
        a0 = (1 - R) - 1
        k("s_mov_b32 %s, %d" % (s(self.s_a), self.lds_base + (a0 % R) * self.slot_bytes))
        k("s_mov_b32 %s, %d" % (s(self.s_b), self.lds_base + ((a0 + 1) % R) * self.slot_bytes))
        k("s_mov_b32 %s, %d" % (s(self.s_c), self.lds_base + ((a0 + 2) % R) * self.slot_bytes))
        for o in pro_vm: k(o.text)
        k("s_mov_b32 %s, %d" % (s(self.s_cnt), self.nstages // U))
        if self.extra: self.extra(k)
        for t in range(16 * NT): k("v_mov_b32 %s, 0" % v(self.acc + t))
        for r in range(len(self.v_rd)):
            k("v_add_u32 %s, %d, %s" % (v(self.v_rd[r]), self.lds_base, v(self.v_rdbase[r])))
        k("s_waitcnt vmcnt(%d)" % min(waits[(-1, "w")], 63))
        k("s_barrier")
        for o in pro_lds: k(o.text)
        lab = self.name + "_loop"
        k(".p2align 6")
        k.label(lab)
        if self.stamp:
            for i in range(7, 0, -1): k("s_mov_b32 s%d, s%d" % (60 + 2 * i, 60 + 2 * (i - 1)))
            k("s_memtime s[60:61]")
        for u in range(U):
            curvm = None
            for p, o in enumerate(bodies[u]):
                for st in range(u, self.nstages, U):
                    assert bodies[st][p].kind == o.kind and bodies[st][p].text == o.text, (st, p, o.text, bodies[st][p].text)
                if o.kind in ("waitvm", "waitlds"):
                    n = min(waits[(st, p)] for st in range(u, self.nstages, U))
                    if o.kind == "waitvm":
                        if "x" in self.abl or "dma" in self.abl:
                            n = self.abl_vm
                        k("s_waitcnt vmcnt(%d)" % min(n, 63))
                    elif "lds" in self.abl: pass
                    else:
                        assert n <= 15, n
                        k("s_waitcnt lgkmcnt(%d)" % n)
                elif o.kind == "pronop": pass
                elif o.kind == "vm" and o.tag[0] in self.abl: pass
                elif o.kind in self.abl: pass
                else: k(o.text)
        k("s_sub_u32 %s, %s, 1" % (s(self.s_cnt), s(self.s_cnt)))
        k("s_cmp_lg_u32 %s, 0" % s(self.s_cnt))
        k("s_cbranch_scc1 %s" % lab)
    abl_vm = 20
    stamp = False
```

```python
import re
TRANS = ("v_exp_f32", "v_log_f32", "v_rcp_f32", "v_rsq_f32", "v_sqrt_f32", "v_sin_f32", "v_cos_f32")
def regs(tok):
    tok = tok.strip()
    neg = tok.lstrip("-")
    if neg.startswith("abs(") or neg.startswith("|"): neg = neg.replace("abs(", "").replace(")", "").replace("|", "")
    m = re.fullmatch(r"([vas])(\d+)", neg)
    if m: return {(m.group(1), int(m.group(2)))}
    m = re.fullmatch(r"([vas])\[(\d+):(\d+)\]", neg)
    if m: return {(m.group(1), i) for i in range(int(m.group(2)), int(m.group(3)) + 1)}
    if neg == "vcc": return {("s", "vcc")}
    if neg == "exec": return {("s", "exec")}
    if neg == "m0": return {("s", "m0")}
    return set()
class I:
    def __init__(self, text):
        self.text = text
        t = text.split(";")[0].strip()
        parts = t.split(None, 1)
        self.op = parts[0]
        rest = parts[1] if len(parts) > 1 else ""
        ops = [x.strip() for x in rest.split(",")] if rest else []
        self.mods = ""
        if ops:
            fixed = []; depth = 0; cur = ""
            for ch in rest:
                if ch == "[": depth += 1
                if ch == "]": depth -= 1
                if ch == "," and depth == 0: fixed.append(cur.strip()); cur = ""
                else: cur += ch
            fixed.append(cur.strip()); ops = fixed
            last = ops[-1].split(None, 1)
            ops[-1] = last[0]; self.mods = last[1] if len(last) > 1 else ""
        self.ops = ops
        op = self.op
        self.mfma = op.startswith("v_mfma")
        self.valu = op.startswith("v_") and not self.mfma
        self.trans = op in TRANS
        self.vmem = op.startswith(("buffer_", "global_"))
        self.ds = op.startswith("ds_")
        self.salu = op.startswith("s_")
        self.w = set(); self.r = set()
        R = [regs(x) for x in ops]
        if self.mfma:
            self.w = R[0]; self.A = R[1]; self.B = R[2]; self.C = R[3]; self.r = R[1] | R[2] | R[3]
            self.passes = 8 if "32x32x16" in op else 4
        elif self.valu:
            if op.startswith("v_cmp"):
                self.w = R[0]; self.r = set().union(*R[1:])
            elif op.startswith("v_permlane") and "swap" in op:
                self.w = R[0] | R[1]; self.r = R[0] | R[1]
            elif op in ("v_add_co_u32", "v_sub_co_u32", "v_addc_co_u32"):
                self.w = R[0] | R[1]; self.r = set().union(*R[2:])
            else:
                self.w = R[0]; self.r = set().union(*R[1:]) if len(R) > 1 else set()
                if op.startswith(("v_fmac", "v_dot2c", "v_pk_fmac")) or "dst_sel" in self.mods or op.startswith("v_writelane"): self.r |= R[0]
        elif self.vmem:
            lds = " lds" in (" " + self.mods) or "_lds_" in op
            if "store" in op or ("atomic" in op):
                self.r = set().union(*R)
                self.data = R[0] if op.startswith("buffer_") else R[1]
                if "atomic" in op and "sc0" in self.mods: self.w = R[0]
            elif lds:
                self.r = set().union(*R) | {("s", "m0")}
            elif op in ("buffer_inv", "buffer_wbl2"): pass
            else:
                self.w = R[0]; self.r = set().union(*R[1:])
        elif self.ds:
            if "read" in op or "permute" in op or "swizzle" in op: self.w = R[0]; self.r = set().union(*R[1:])
            else: self.r = set().union(*R)
        elif self.salu:
            if op.startswith(("s_cmp", "s_cbranch", "s_branch", "s_waitcnt", "s_nop", "s_barrier", "s_sleep", "s_endpgm", "s_setprio", "s_bitcmp")):
                self.r = set().union(*R) if R else set()
            else:
                self.w = R[0] if R else set(); self.r = set().union(*R[1:]) if len(R) > 1 else set()
                if "saveexec" in op: self.w |= {("s", "exec")}
        self.states = int(ops[0]) + 1 if op == "s_nop" else 1
        self.dpp = "_dpp" in op or "row_" in self.mods or "quad_perm" in self.mods
        self.wide_store = self.vmem and "store" in op and ("x4" in op or "x3" in op)
def need(p, c):
    n = 0
    vg = lambda S: {x for x in S if x[0] in "va"}
    sg = lambda S: {x for x in S if x[0] == "s"}
    if p.valu:
        pv = vg(p.w); ps = sg(p.w)
        if c.mfma and pv & c.r: n = max(n, 2)
        if c.mfma and ("s", "exec") in ps: n = max(n, 4)
        if c.valu:
            if p.trans and not c.trans and pv & c.r: n = max(n, 1)
            if p.trans and c.trans and pv & c.r: n = max(n, 1)
            if c.op.startswith("v_permlane") and pv & c.r: n = max(n, 2)
            if c.dpp and pv & c.r: n = max(n, 2)
            if c.op.startswith(("v_readlane", "v_readfirstlane")) and pv & c.r: n = max(n, 1)
            rs = set(c.r)
            if c.op.startswith(("v_cndmask", "v_addc", "v_subb")) and len(c.ops) < 4: rs |= {("s", "vcc")}
            if ps & sg(rs): n = max(n, 4 if c.op.startswith(("v_readlane", "v_writelane")) else 2)
            if "sdwa" in p.op or "op_sel" in p.mods and "pk_" not in p.op:
                if pv & c.r: n = max(n, 1)
        if c.vmem and ps & sg(c.r): n = max(n, 5)
        if c.salu and ps & c.r: n = max(n, 1)
    if p.mfma:
        big = {8: 12, 4: 8}[p.passes]
        if c.mfma:
            if p.w & (c.A | c.B): n = max(n, big)
            if p.w & c.C and not (p.w == c.C and p.passes == c.passes): n = max(n, big - 2)
            if p.w & c.w and not (p.w & c.C): n = max(n, big)
        elif c.valu:
            if p.w & (c.r | c.w): n = max(n, big)
            if p.C & c.w: n = max(n, {8: 7, 4: 3}[p.passes])
        elif c.vmem or c.ds:
            if p.w & (c.r | c.w): n = max(n, big)
    if p.salu and ("s", "m0") in p.w and c.vmem and ("s", "m0") in c.r: n = max(n, 1)
    if p.wide_store and (c.valu or c.mfma) and p.data & c.w: n = max(n, 2)
    return n
def fix(lines):
    out = []; hist = []
    ins = 0
    for l in lines:
        t = l.strip()
        if not t or t.startswith((";", ".")) or t.endswith(":"):
            out.append(l); continue
        c = I(t)
        dist = 0; pad = 0
        for p in reversed(hist):
            if dist >= 20: break
            pad = max(pad, need(p, c) - dist)
            dist += p.states
        while pad > 0:
            n = min(pad, 16)
            out.append("    s_nop %d" % (n - 1)); hist.append(I("s_nop %d" % (n - 1))); pad -= n; ins += 1
        out.append(l); hist.append(c)
        if len(hist) > 40: hist = hist[-30:]
    return out
```

```python
import sys
from asmgen import *
from core import Core
from hazard import fix

WS_MODP = 0x0; WS_MOD = 0x10000; WS_UT = 0x20000; WS_STATS = 0x40000
WS_P = 0x100000; WS_ZP = 0x500000; WS_R = 0x520000; WS_RZ = 0x540000; WS_FILL_END = 0x541000
WS_H1 = 0x600000; WS_O = 0xA00000; WS_X1 = 0xE00000; WS_Y = 0x1200000; WS_HH = 0x1600000
WS_STAMP = 0x3000000
A_X, A_WQKV, A_WPHI, A_WO, B_X, B_W1, B_B1, B_W2, B_B2, A_C, A_WMOD, A_OUT, A_DBG, A_WS = [8 * i for i in range(14)]
LOG2E = 0x3fb8aa3b
STAMPS = False
NT_W = ""
ST = " sc1"

def srd(k, d, base, off=None, size=None, soff=None):
    if soff is not None:
        k("s_add_u32 %s, %s, %s\ns_addc_u32 %s, %s, 0" % (s(d), s(base), s(soff), s(d + 1), s(base + 1)))
        if off: k("s_add_u32 %s, %s, %d\ns_addc_u32 %s, %s, 0" % (s(d), s(d), off, s(d + 1), s(d + 1)))
    elif off:
        k("s_add_u32 %s, %s, %d\ns_addc_u32 %s, %s, 0" % (s(d), s(base), off, s(d + 1), s(base + 1)))
    else:
        k("s_mov_b32 %s, %s\ns_mov_b32 %s, %s" % (s(d), s(base), s(d + 1), s(base + 1)))
    if size is not None: k("s_mov_b32 %s, %s" % (s(d + 2), size if isinstance(size, str) else str(size)))
    k("s_mov_b32 %s, 0x20000" % s(d + 3))

def start(k, name, nwg, idx):
    k("s_cmp_ge_u32 s2, %d\ns_cbranch_scc1 %s_end" % (nwg, name))
    if STAMPS: k("s_memrealtime s[96:97]")
    k("s_load_dwordx2 s[4:5], s[0:1], %d" % A_WS)
def finish(k, name, idx):
    if STAMPS:
        k("s_waitcnt vmcnt(0)")
        k("s_memrealtime s[98:99]")
        k("s_waitcnt lgkmcnt(0)")
        k("s_lshl_b32 s3, s2, 3\ns_add_u32 s3, s3, %d" % (WS_STAMP + idx * 4096))
        k("v_mov_b32 v2, s96\nv_mov_b32 v3, s98\nv_mov_b32 v1, s3")
        k("global_store_dwordx2 v1, v[2:3], s[4:5]")
    k.label(name + "_end")
    k("s_endpgm")
def lane_setup(k):
    k("v_and_b32 v1, 63, v0\nv_lshrrev_b32 v2, 6, v0\nv_readfirstlane_b32 s20, v2")
def unpack(k, lo, hi, src):
    k("v_lshlrev_b32 %s, 16, %s\nv_and_b32 %s, 0xffff0000, %s" % (v(lo), v(src), v(hi), v(src)))
def trbase(k, dst, rowstride, hfstride, tmp, swz=None):
    k("v_lshrrev_b32 %s, 5, v1" % v(tmp))
    k("v_mul_u32_u24 %s, %d, %s" % (v(dst), hfstride, v(tmp)))
    k("v_bfe_u32 %s, v1, 2, 2" % v(tmp))
    k("v_mul_u32_u24 %s, %d, %s" % (v(tmp), rowstride, v(tmp)))
    k("v_add_u32 %s, %s, %s" % (v(dst), v(dst), v(tmp)))
    k("v_bfe_u32 %s, v1, 4, 1" % v(tmp))
    k("v_lshl_add_u32 %s, %s, 5, %s" % (v(dst), v(tmp), v(dst)))
    k("v_and_b32 %s, 1, v1" % v(tmp))
    k("v_lshl_add_u32 %s, %s, 4, %s" % (v(dst), v(tmp), v(dst)))
    k("v_bfe_u32 %s, v1, 1, 1" % v(tmp))
    k("v_lshl_add_u32 %s, %s, 3, %s" % (v(dst), v(tmp), v(dst)))
    if swz is not None:
        k("v_bfe_u32 %s, v1, 3, 1" % v(tmp))
        k("v_lshl_add_u32 %s, %s, 6, %s" % (v(dst), v(tmp), v(dst)))
        k("v_xor_b32 %s, 64, %s" % (v(swz), v(dst)))
def pair_dma_offsets(k, dsts, rowstride, segstride, tmp):
    k("v_lshrrev_b32 %s, 3, v1" % v(tmp))
    k("s_lshl_b32 s25, s20, 4")
    k("v_add_u32 %s, s25, %s" % (v(tmp), v(tmp)))
    k("v_mul_u32_u24 %s, %d, %s" % (v(tmp), rowstride, v(tmp)))
    k("v_bfe_u32 %s, v1, 4, 1\nv_lshlrev_b32 %s, 2, %s" % (v(tmp + 1), v(tmp + 1), v(tmp + 1)))
    k("v_and_b32 %s, 7, v1\nv_xor_b32 %s, %s, %s" % (v(tmp + 2), v(tmp + 1), v(tmp + 1), v(tmp + 2)))
    k("v_lshl_add_u32 %s, %s, 4, %s" % (v(tmp), v(tmp + 1), v(tmp)))
    for i, d in enumerate(dsts):
        c = (i // 2) * segstride + (i % 2) * 8 * rowstride - (i % 4) * 1024
        assert c >= 0
        k("v_add_u32 %s, %d, %s" % (v(d), c, v(tmp)))

def gemv(name, idx, kind):
    k = K()
    mod = kind == "mod"
    ncg = 96 if mod else 56; nks = 2 if mod else 4; rows = 512 if mod else 256; rs = 12288 if mod else 7168
    npass = rows // 32
    start(k, name, ncg * nks, idx)
    k("s_load_dwordx2 s[6:7], s[0:1], %d" % (A_WMOD if mod else B_W1))
    if mod: k("s_load_dwordx2 s[16:17], s[0:1], %d" % A_C)
    k("s_mov_b32 s21, %d\ns_mul_hi_u32 s22, s2, s21" % ((1 << 32) // ncg + 1))
    k("s_mul_i32 s21, s22, %d\ns_sub_u32 s21, s2, s21" % ncg)
    k("v_lshrrev_b32 v3, 3, v0\nv_and_b32 v4, 7, v0")
    k("v_mul_u32_u24 v5, %d, v3\nv_lshl_add_u32 v5, v4, 4, v5" % rs)
    k("s_mul_i32 s23, s22, %d\ns_lshl_b32 s24, s21, 7\ns_add_u32 s23, s23, s24" % (rows * rs))
    k("s_waitcnt lgkmcnt(0)")
    srd(k, 8, 6, soff=23); k("s_sub_u32 s10, %d, s23" % (1024 * rs))
    k("s_mov_b32 s24, 0")
    for p in range(npass):
        k("buffer_load_dwordx4 %s, v5, s[8:11], s24 offen nt" % v(64 + 4 * p, 4))
        if p + 1 < npass: k("s_add_u32 s24, s24, %d" % (32 * rs))
    if mod:
        srd(k, 12, 16, size=2048)
        k("v_lshlrev_b32 v6, 2, v0\ns_lshl_b32 s24, s22, 10")
        k("buffer_load_dword v7, v6, s[12:15], s24 offen")
        k("s_waitcnt vmcnt(0)")
        unpack(k, 8, 9, 7)
        for r in (8, 9):
            k("v_mul_f32 v10, 0xbfb8aa3b, %s\nv_exp_f32 v10, v10\nv_add_f32 v10, 1.0, v10\nv_rcp_f32 v10, v10\nv_mul_f32 %s, %s, v10" % (v(r), v(r), v(r)))
        k("v_cvt_pk_bf16_f32 v7, v8, v9")
        unpack(k, 8, 9, 7)
        k("v_lshlrev_b32 v6, 3, v0\nds_write_b64 v6, v[8:9]")
        nvec = 1
    else:
        srd(k, 12, 4, off=WS_MOD, size=24576)
        k("v_lshlrev_b32 v6, 2, v0\ns_lshl_b32 s24, s22, 10\ns_add_u32 s25, s24, 16384\ns_add_u32 s24, s24, 12288")
        k("buffer_load_dword v8, v6, s[12:15], s25 offen")
        k("buffer_load_dword v9, v6, s[12:15], s24 offen")
        k("s_waitcnt vmcnt(0)")
        k("ds_write_b32 v6, v8\nds_write_b32 v6, v9 offset:1024")
        nvec = 2
    k("s_waitcnt lgkmcnt(0)\ns_barrier")
    k("v_lshlrev_b32 v6, 2, v3")
    for j in range(nvec):
        for p in range(npass): k("ds_read_b32 %s, v6 offset:%d" % (v(32 + 16 * j + p), j * 1024 + p * 128))
    for j in range(8 * nvec): k("v_mov_b32 %s, 0" % v(12 + j))
    k("s_waitcnt lgkmcnt(0)")
    for p in range(npass):
        for e in range(4):
            unpack(k, 8, 9, 64 + 4 * p + e)
            for j in range(nvec):
                k("v_fmac_f32 %s, %s, v8\nv_fmac_f32 %s, %s, v9" % (v(12 + 8 * j + 2 * e), v(32 + 16 * j + p), v(13 + 8 * j + 2 * e), v(32 + 16 * j + p)))
    k("v_lshlrev_b32 v6, 5, v0")
    for j in range(nvec):
        k("ds_write_b128 v6, %s offset:%d\nds_write_b128 v6, %s offset:%d" % (v(12 + 8 * j, 4), 2048 + j * 8192, v(16 + 8 * j, 4), 2048 + j * 8192 + 16))
    k("s_waitcnt lgkmcnt(0)\ns_barrier")
    k("v_cmp_gt_u32 vcc, %d, v0\ns_and_saveexec_b64 s[26:27], vcc\ns_cbranch_execz %s_fin" % (64 * nvec, name))
    k("v_and_b32 v6, 63, v0\nv_lshrrev_b32 v7, 6, v0\nv_lshlrev_b32 v8, 2, v6\nv_lshl_add_u32 v8, v7, 13, v8")
    for r in range(32): k("ds_read_b32 %s, v8 offset:%d" % (v(32 + r), 2048 + r * 256))
    k("s_waitcnt lgkmcnt(0)")
    for st in (16, 8, 4, 2, 1):
        for r in range(st): k("v_add_f32 %s, %s, %s" % (v(32 + r), v(32 + r), v(32 + r + st)))
    if mod:
        srd(k, 12, 4, off=WS_MODP, size=49152)
        k("s_mul_i32 s24, s22, 24576\ns_lshl_b32 s25, s21, 8\ns_add_u32 s24, s24, s25")
        k("v_lshlrev_b32 v6, 2, v6")
    else:
        srd(k, 12, 4, off=WS_UT, size=4 * 2 * 3584 * 4)
        k("s_mul_i32 s24, s22, %d\ns_lshl_b32 s25, s21, 8\ns_add_u32 s24, s24, s25" % (2 * 3584 * 4))
        k("v_mul_u32_u24 v7, %d, v7\nv_lshl_add_u32 v6, v6, 2, v7" % (3584 * 4))
    k("buffer_store_dword v32, v6, s[12:15], s24 offen")
    k.label(name + "_fin")
    k("s_mov_b64 exec, -1")
    finish(k, name, idx)
    return k, (ncg * nks, 256, 2048 + 16384, 128, 102, 128)

def k0b(name, idx):
    k = K()
    start(k, name, 256, idx)
    k("s_load_dwordx2 s[6:7], s[0:1], %d" % A_X)
    lane_setup(k)
    k("v_and_b32 v3, 7, v1\nv_lshrrev_b32 v4, 3, v1")
    k("s_lshl_b32 s21, s20, 5\nv_add_u32 v4, s21, v4")
    k("v_lshlrev_b32 v5, 11, v3\nv_lshl_add_u32 v5, v4, 4, v5")
    k("s_lshl_b32 s22, s2, 14")
    k("s_waitcnt lgkmcnt(0)")
    srd(k, 8, 6, soff=22, size=16384)
    for p in range(4): k("buffer_load_dwordx4 %s, v5, s[8:11], 0 offen offset:%d nt" % (v(32 + 4 * p, 4), p * 128))
    srd(k, 12, 4, off=WS_MODP, size=49152)
    k("v_lshlrev_b32 v6, 5, v0\ns_mov_b32 s23, 24576")
    k("buffer_load_dwordx4 v[48:51], v6, s[12:15], 0 offen\nbuffer_load_dwordx4 v[52:55], v6, s[12:15], 0 offen offset:16")
    k("buffer_load_dwordx4 v[56:59], v6, s[12:15], s23 offen\nbuffer_load_dwordx4 v[60:63], v6, s[12:15], s23 offen offset:16")
    k("v_lshlrev_b32 v7, 2, v0\ns_lshl_b32 s24, s2, 10\ns_add_u32 s25, s24, 24576")
    k("buffer_load_dword v64, v7, s[12:15], s24 offen\nbuffer_load_dword v65, v7, s[12:15], s25 offen")
    srd(k, 16, 4, off=WS_P, size=WS_FILL_END - WS_P)
    k("v_mov_b32 v68, -1\nv_mov_b32 v69, -1\nv_mov_b32 v70, -1\nv_mov_b32 v71, -1")
    k("v_lshlrev_b32 v8, 4, v0\ns_mul_i32 s26, s2, 20480")
    for p in range(5):
        k("buffer_store_dwordx4 v[68:71], v8, s[16:19], s26 offen sc1")
        if p < 4: k("s_add_u32 s26, s26, 4096")
    k("s_waitcnt vmcnt(5)")
    for e in range(8): k("v_add_f32 %s, %s, %s" % (v(48 + e), v(48 + e), v(56 + e)))
    for e in range(4):
        k("v_cvt_pk_bf16_f32 v9, %s, %s" % (v(48 + 2 * e), v(49 + 2 * e))); unpack(k, 48 + 2 * e, 49 + 2 * e, 9)
    k("v_cmp_lt_u32 vcc, 127, v0\nv_cndmask_b32 v10, 0, 1.0, vcc")
    for e in range(8): k("v_add_f32 %s, %s, v10" % (v(48 + e), v(48 + e)))
    for e in range(4):
        k("v_cvt_pk_bf16_f32 v9, %s, %s" % (v(48 + 2 * e), v(49 + 2 * e))); unpack(k, 48 + 2 * e, 49 + 2 * e, 9)
    k("ds_write_b128 v6, v[48:51]\nds_write_b128 v6, v[52:55] offset:16")
    k("v_add_f32 v64, v64, v65\nv_cvt_pk_bf16_f32 v64, v64, v64\nv_lshlrev_b32 v64, 16, v64")
    k("s_lshr_b32 s27, s2, 2\ns_cmp_eq_u32 s27, 4\ns_cselect_b32 s27, 1.0, 0")
    k("v_add_f32 v64, s27, v64\nv_cvt_pk_bf16_f32 v64, v64, v64\nv_lshlrev_b32 v64, 16, v64")
    srd(k, 12, 4, off=WS_MOD, size=24576)
    k("buffer_store_dword v64, v7, s[12:15], s24 offen")
    for e in range(16): unpack(k, 72 + 2 * e, 73 + 2 * e, 32 + e)
    def wave_reduce(src):
        k("v_add_f32_dpp %s, %s, %s row_ror:8 row_mask:0xf bank_mask:0xf" % (v(src), v(src), v(src)))
        k("v_mov_b32 v11, %s\nv_permlane16_swap_b32 v11, %s\nv_add_f32 %s, %s, v11" % (v(src), v(src), v(src), v(src)))
        k("v_mov_b32 v11, %s\nv_permlane32_swap_b32 v11, %s\nv_add_f32 %s, %s, v11" % (v(src), v(src), v(src), v(src)))
    def wg_reduce(src, off):
        wave_reduce(src)
        k("v_lshlrev_b32 v12, 4, v3\ns_lshl_b32 s27, s20, 2\nv_add_u32 v13, s27, v12")
        k("ds_write_b32 v13, %s offset:%d" % (v(src), off))
        k("s_waitcnt lgkmcnt(0)\ns_barrier")
        k("ds_read_b128 v[16:19], v12 offset:%d" % off)
        k("s_waitcnt lgkmcnt(0)")
        k("v_add_f32 v16, v16, v17\nv_add_f32 v18, v18, v19\nv_add_f32 %s, v16, v18" % v(src))
    k("v_add_f32 v14, v72, v73")
    for e in range(2, 32): k("v_add_f32 v14, v14, %s" % v(72 + e))
    wg_reduce(14, 8192)
    k("v_mul_f32 v14, 0x3a800000, v14")
    for e in range(32): k("v_sub_f32 %s, %s, v14" % (v(72 + e), v(72 + e)))
    k("v_mul_f32 v15, v72, v72")
    for e in range(1, 32): k("v_fmac_f32 v15, %s, %s" % (v(72 + e), v(72 + e)))
    wg_reduce(15, 8192 + 128)
    k("v_mov_b32 v16, 0x3727c5ac\nv_fmac_f32 v16, 0x3a800000, v15\nv_rsq_f32 v15, v16")
    k("v_lshlrev_b32 v12, 5, v4")
    srd(k, 8, 4, off=WS_H1, size=4 << 20)
    k("s_lshr_b32 s24, s2, 2\ns_lshl_b32 s24, s24, 16\ns_and_b32 s25, s2, 3\ns_lshl_b32 s25, s25, 7\ns_add_u32 s24, s24, s25")
    k("v_lshrrev_b32 v13, 1, v4\nv_lshlrev_b32 v13, 10, v13\nv_and_b32 v11, 1, v4\nv_lshl_add_u32 v13, v11, 9, v13\nv_lshl_add_u32 v13, v3, 4, v13")
    for p in range(4):
        k("ds_read_b128 v[104:107], v12 offset:%d\nds_read_b128 v[108:111], v12 offset:%d" % (p * 256, p * 256 + 16))
        k("ds_read_b128 v[112:115], v12 offset:%d\nds_read_b128 v[116:119], v12 offset:%d" % (4096 + p * 256, 4096 + p * 256 + 16))
        k("s_waitcnt lgkmcnt(0)")
        for e in range(8):
            x = 72 + 8 * p + e
            k("v_mul_f32 %s, %s, v15\nv_fma_f32 %s, %s, %s, %s" % (v(x), v(x), v(x), v(x), v(112 + e), v(104 + e)))
        for e in range(4): k("v_cvt_pk_bf16_f32 %s, %s, %s" % (v(32 + 4 * p + e), v(72 + 8 * p + 2 * e), v(73 + 8 * p + 2 * e)))
        k("buffer_store_dwordx4 %s, v13, s[8:11], s24 offen%s" % (v(32 + 4 * p, 4), ST))
        if p < 3: k("s_add_u32 s24, s24, 4096")
    finish(k, name, idx)
    return k, (256, 256, 8192 + 256, 128, 102, 128)

def softmax_pm(k, x, outp, outm, t):
    ep, em = t, t + 16; mx, mn, a_, sp, sm = t + 32, t + 33, t + 34, t + 36, t + 37
    k("v_max3_f32 %s, %s, %s, %s\nv_min3_f32 %s, %s, %s, %s" % (v(mx), v(x), v(x + 1), v(x + 2), v(mn), v(x), v(x + 1), v(x + 2)))
    for e in range(3, 15, 2):
        k("v_max3_f32 %s, %s, %s, %s\nv_min3_f32 %s, %s, %s, %s" % (v(mx), v(mx), v(x + e), v(x + e + 1), v(mn), v(mn), v(x + e), v(x + e + 1)))
    k("v_max_f32 %s, %s, %s\nv_min_f32 %s, %s, %s" % (v(mx), v(mx), v(x + 15), v(mn), v(mn), v(x + 15)))
    k("v_mov_b32 %s, %s\nv_mov_b32 %s, %s" % (v(a_), v(mx), v(a_ + 1), v(mn)))
    k("v_permlane32_swap_b32 %s, %s\nv_permlane32_swap_b32 %s, %s" % (v(a_), v(mx), v(a_ + 1), v(mn)))
    k("v_max_f32 %s, %s, %s\nv_min_f32 %s, %s, %s" % (v(mx), v(mx), v(a_), v(mn), v(mn), v(a_ + 1)))
    k("v_mul_f32 %s, s29, %s\nv_mul_f32 %s, s29, %s" % (v(mx), v(mx), v(mn), v(mn)))
    for e in range(16):
        k("v_fma_f32 %s, %s, s29, -%s\nv_fma_f32 %s, -%s, s29, %s" % (v(ep + e), v(x + e), v(mx), v(em + e), v(x + e), v(mn)))
    for e in range(32): k("v_exp_f32 %s, %s" % (v(ep + e), v(ep + e)))
    for b, d in ((ep, sp), (em, sm)):
        k("v_pk_add_f32 %s, %s, %s" % (v(a_, 2), v(b, 2), v(b + 2, 2)))
        for e in range(4, 16, 2): k("v_pk_add_f32 %s, %s, %s" % (v(a_, 2), v(a_, 2), v(b + e, 2)))
        k("v_add_f32 %s, %s, %s" % (v(d), v(a_), v(a_ + 1)))
    k("v_mov_b32 %s, %s\nv_mov_b32 %s, %s" % (v(a_), v(sp), v(a_ + 1), v(sm)))
    k("v_permlane32_swap_b32 %s, %s\nv_permlane32_swap_b32 %s, %s" % (v(a_), v(sp), v(a_ + 1), v(sm)))
    k("v_add_f32 %s, %s, %s\nv_add_f32 %s, %s, %s" % (v(sp), v(sp), v(a_), v(sm), v(sm), v(a_ + 1)))
    k("v_rcp_f32 %s, %s\nv_rcp_f32 %s, %s" % (v(sp), v(sp), v(sm), v(sm)))
    for e in range(0, 16, 2):
        k("v_pk_mul_f32 %s, %s, %s op_sel_hi:[1,0]" % (v(ep + e, 2), v(ep + e, 2), v(sp, 2)))
        k("v_pk_mul_f32 %s, %s, %s op_sel:[0,1]" % (v(em + e, 2), v(em + e, 2), v(sp, 2)))
    for e in range(8):
        k("v_cvt_pk_bf16_f32 %s, %s, %s" % (v(outp + e), v(ep + 2 * e), v(ep + 2 * e + 1)))
        k("v_cvt_pk_bf16_f32 %s, %s, %s" % (v(outm + e), v(em + 2 * e), v(em + 2 * e + 1)))

def pack8(k, dst, src):
    for e in range(4): k("v_cvt_pk_bf16_f32 %s, %s, %s" % (v(dst + e), v(src + 2 * e), v(src + 2 * e + 1)))

def poll(k, name, loads, first, nreg, t):
    k("s_mov_b32 s37, 0")
    k.label(name)
    for l in loads: k(l)
    k("s_waitcnt vmcnt(0)")
    k("v_max3_u32 %s, %s, %s, %s" % (v(t), v(first), v(first + 1), v(first + 2)))
    for e in range(3, nreg - 1, 2): k("v_max3_u32 %s, %s, %s, %s" % (v(t), v(t), v(first + e), v(first + e + 1)))
    k("v_max_u32 %s, %s, %s" % (v(t), v(t), v(first + nreg - 1)))
    k("v_cmp_eq_u32 vcc, -1, %s" % v(t))
    k("s_add_u32 s37, s37, 1\ns_cmp_gt_u32 s37, 0x40000\ns_cbranch_scc1 %s_out" % name)
    k("s_cbranch_vccz %s_out\ns_sleep 1\ns_branch %s" % (name, name))
    k.label(name + "_out")

def g1(name, idx):
    k = K()
    start(k, name, 256, idx)
    k("s_load_dwordx2 s[6:7], s[0:1], %d\ns_load_dwordx2 s[30:31], s[0:1], %d" % (A_WQKV, A_WPHI))
    lane_setup(k)
    k("s_and_b32 s21, s2, 1\ns_lshl_b32 s21, s21, 3\ns_bfe_u32 s22, s2, 0x30003\ns_add_u32 s21, s21, s22")
    k("s_bfe_u32 s22, s2, 0x20001\ns_lshl_b32 s22, s22, 2\ns_lshr_b32 s23, s2, 6\ns_add_u32 s22, s22, s23")
    k("s_lshl_b32 s24, s21, 2\ns_add_u32 s24, s24, s20")
    pair_dma_offsets(k, list(range(10, 16)), 6144, 2048, 3)
    trbase(k, 16, 128, 1024, 3, swz=17)
    k("v_lshlrev_b32 v9, 4, v1")
    k("s_waitcnt lgkmcnt(0)")
    k("s_lshl_b32 s25, s24, 16"); srd(k, 8, 4, off=WS_H1, size=65536, soff=25)
    k("s_lshl_b32 s25, s22, 7"); srd(k, 12, 6, soff=25); k("s_sub_u32 s14, %d, s25" % (1024 * 6144))
    RING = 5 * 24576; WPHI = RING
    k("s_lshl_b32 s25, s22, 12"); srd(k, 16, 30, size=4096, soff=25)
    k("s_lshl_b32 s25, s20, 10\ns_add_u32 m0, s25, %d" % WPHI)
    k("buffer_load_dwordx4 v9, s[16:19], s25 offen lds")
    k("s_mov_b32 s26, 0\ns_mov_b32 s27, 0\ns_mul_i32 s36, s20, 6144\ns_mov_b32 s29, 0x%x" % LOG2E)
    ACC = 32
    c = Core(k, name, NT=6, nstages=16, R=5, XR=16, NI=6, slot_bytes=24576, PD=1, acc=ACC, wf=0, xr=128,
             v_xoff=9, s_xsrd=8, s_xk=26, v_woff=list(range(10, 16)), s_wsrd=12, s_wk=27, w_stage_stride=64 * 6144,
             v_rd=[7, 8], v_rdbase=[16, 17], rd_off=lambda j, t, q: (t % 2, j * 6144 + (t // 2) * 2048 + q * 512),
             s_a=32, s_b=33, s_c=34, s_wv=36, lds_base=0, s_cnt=35, swapped=[True, True, True, True, False, False])
    c.emit()
    k("s_waitcnt vmcnt(0) lgkmcnt(0)\ns_barrier")
    trbase(k, 18, 64, 512, 3)
    k("v_add_u32 v18, %d, v18" % WPHI)
    for h in range(2):
        for s_ in range(2):
            for q in range(2):
                k("ds_read_b64_tr_b16 %s, v18 offset:%d" % (v(128 + (2 * h + s_) * 4 + 2 * q, 2), h * 2048 + s_ * 1024 + q * 256))
    k("v_and_b32 v3, 31, v1\nv_lshrrev_b32 v4, 5, v1\nv_bfe_u32 v5, v1, 1, 2\nv_xor_b32 v4, v4, v5")
    k("v_lshlrev_b32 v19, 6, v3\nv_lshl_add_u32 v19, v4, 4, v19\ns_lshl_b32 s25, s20, 11\nv_add_u32 v19, s25, v19\nv_xor_b32 v20, 32, v19")
    k("v_add_u32 v21, s25, v9")
    PK = 144; LG = 160; PP = 176; T = 192
    for h in range(2):
        for s_ in range(2):
            pack8(k, PK + 4 * s_, ACC + 16 * (4 + h) + 8 * s_)
            k("ds_write_b128 v21, %s offset:%d" % (v(PK + 4 * s_, 4), 32768 + h * 8192 + s_ * 1024))
    k("s_waitcnt lgkmcnt(0)")
    def feat(tile, h, outp, outm):
        for s_ in range(2): pack8(k, PK + 8 + 4 * s_, ACC + 16 * tile + 8 * s_)
        k("v_mfma_f32_32x32x16_bf16 %s, %s, %s, 0" % (v(LG, 16), v(128 + 8 * h, 4), v(PK + 8, 4)))
        k("v_mfma_f32_32x32x16_bf16 %s, %s, %s, %s" % (v(LG, 16), v(128 + 8 * h + 4, 4), v(PK + 12, 4), v(LG, 16)))
        softmax_pm(k, LG, outp, outm, T)
    for h in range(2):
        feat(2 + h, h, PP, PP + 8)
        for sg in range(2):
            k("ds_write_b128 v19, %s offset:%d" % (v(PP + 8 * sg, 4), (2 * h + sg) * 8192))
            k("ds_write_b128 v20, %s offset:%d" % (v(PP + 8 * sg + 4, 4), (2 * h + sg) * 8192))
    k("s_waitcnt lgkmcnt(0)\ns_barrier")
    k("v_lshrrev_b32 v3, 5, v1\nv_bfe_u32 v4, v1, 2, 2\nv_lshl_add_u32 v5, v3, 2, v4\nv_lshlrev_b32 v22, 6, v5")
    k("v_bfe_u32 v5, v1, 4, 1\nv_and_b32 v6, 1, v1\nv_lshl_add_u32 v5, v5, 1, v6")
    k("v_lshrrev_b32 v4, 1, v4\nv_lshl_add_u32 v4, v3, 1, v4\nv_xor_b32 v5, v5, v4")
    k("v_lshl_add_u32 v22, v5, 4, v22\nv_bfe_u32 v5, v1, 1, 1\nv_lshl_add_u32 v22, v5, 3, v22")
    k("s_lshl_b32 s25, s20, 13\nv_add_u32 v22, s25, v22")
    k("s_lshr_b32 s25, s20, 1\ns_lshl_b32 s25, s25, 13\nv_add_u32 v23, s25, v9")
    FA = 64; FB = 96
    for ks in range(8):
        for jj in range(2):
            k("ds_read_b64_tr_b16 %s, v22 offset:%d" % (v(FA + 4 * ks + 2 * jj, 2), (16 * ks + 8 * jj) * 64))
        k("ds_read_b128 %s, v23 offset:%d" % (v(FB + 4 * ks, 4), 32768 + ks * 1024))
    for e in range(4): k("v_mov_b32 %s, 0x3f803f80" % v(PK + e))
    KV = 160; ZZ = 176
    for ks in range(8):
        k("s_waitcnt lgkmcnt(%d)" % min(15, 3 * (7 - ks)))
        k("v_mfma_f32_32x32x16_bf16 %s, %s, %s, %s" % (v(KV, 16), v(FA + 4 * ks, 4), v(FB + 4 * ks, 4), v(KV, 16) if ks else "0"))
        k("v_mfma_f32_32x32x16_bf16 %s, %s, %s, %s" % (v(ZZ, 16), v(FA + 4 * ks, 4), v(PK, 4), v(ZZ, 16) if ks else "0"))
    k("s_lshl_b32 s25, s22, 4\ns_add_u32 s25, s25, s21")
    k("s_lshl_b32 s28, s25, 14\ns_lshl_b32 s38, s20, 12\ns_add_u32 s28, s28, s38")
    srd(k, 16, 4, off=WS_P, size=WS_FILL_END - WS_P)
    for q in range(4): k("buffer_store_dwordx4 %s, v9, s[16:19], s28 offen offset:%d sc1" % (v(KV + 4 * q, 4), q * 1024))
    k("v_lshrrev_b32 v24, 5, v1\nv_lshlrev_b32 v24, 4, v24")
    k("s_lshl_b32 s28, s25, 9\ns_lshl_b32 s38, s20, 7\ns_add_u32 s28, s28, s38\ns_add_u32 s28, s28, %d" % (WS_ZP - WS_P))
    k("s_mov_b32 exec_lo, 1\ns_mov_b32 exec_hi, 1")
    for q in range(4): k("buffer_store_dwordx4 %s, v24, s[16:19], s28 offen offset:%d sc1" % (v(ZZ + 4 * q, 4), q * 32))
    k("s_mov_b64 exec, -1")
    for h in range(2): feat(h, h, 64 + 16 * h, 64 + 16 * h + 8)
    k("s_cmp_gt_u32 s20, 1\ns_cbranch_scc1 %s_p2" % name)
    k("s_movk_i32 s39, 512\ns_mov_b32 s59, %d" % (WS_RZ - WS_P))
    k("s_cmp_eq_u32 s20, 0\ns_cselect_b32 s38, 18, 13\ns_cselect_b32 s56, 10, 5\ns_cselect_b32 s57, 0, %d" % (WS_ZP - WS_P))
    k("s_cselect_b32 s39, 16384, s39\ns_cselect_b64 vcc, -1, 0\ns_cselect_b32 s58, 13, 8\ns_cselect_b32 s59, %d, s59" % (WS_R - WS_P))
    k("s_lshl_b32 s28, s22, s38\ns_lshl_b32 s38, s21, s56\ns_add_u32 s28, s28, s38\ns_add_u32 s28, s28, s57")
    k("v_cndmask_b32 v25, v24, v9, vcc")
    for i in range(1, 16): k("s_add_u32 %s, %s, s39" % (s(40 + i), s(40 + i - 1) if i > 1 else "s28"))
    G = 96
    loads = ["buffer_load_dwordx4 %s, v25, s[16:19], %s offen sc1" % (v(G + 4 * i, 4), s(40 + i) if i else "s28") for i in range(16)]
    poll(k, name + "_poll1", loads, G, 64, 26)
    for st in (8, 4, 2, 1):
        for i in range(st):
            for e in range(0, 4, 2): k("v_pk_add_f32 %s, %s, %s" % (v(G + 4 * i + e, 2), v(G + 4 * i + e, 2), v(G + 4 * (i + st) + e, 2)))
    k("v_cvt_pk_bf16_f32 v26, %s, %s\nv_cvt_pk_bf16_f32 v27, %s, %s" % (v(G), v(G + 1), v(G + 2), v(G + 3)))
    k("v_min_u32 v26, 0xfffeffff, v26\nv_min_u32 v27, 0xfffeffff, v27")
    k("s_lshl_b32 s28, s22, s58\ns_lshr_b32 s39, s21, 1\ns_lshl_b32 s39, s39, s56\ns_add_u32 s28, s28, s39")
    k("s_and_b32 s39, s21, 1\ns_lshl_b32 s39, s39, 3\ns_add_u32 s28, s28, s39\ns_add_u32 s28, s28, s59")
    k("buffer_store_dwordx2 v[26:27], v25, s[16:19], s28 offen sc1")
    k.label(name + "_p2")
    k("s_lshl_b32 s28, s22, 13\ns_add_u32 s28, s28, %d\ns_add_u32 s38, s28, 4096" % (WS_R - WS_P))
    k("s_lshl_b32 s39, s22, 8\ns_add_u32 s39, s39, %d" % (WS_RZ - WS_P))
    loads = ["buffer_load_dwordx4 %s, v9, s[16:19], %s offen offset:%d sc1" % (v(G + 4 * i, 4), "s28" if i < 4 else "s38", (i % 4) * 1024) for i in range(8)]
    loads += ["buffer_load_dwordx4 %s, v24, s[16:19], s39 offen offset:%d sc1" % (v(G + 32 + 4 * i, 4), i * 32) for i in range(8)]
    poll(k, name + "_poll2", loads, G, 64, 26)
    k("s_lshl_b32 s25, s24, 16\ns_lshl_b32 s28, s22, 12\ns_add_u32 s25, s25, s28")
    srd(k, 8, 4, off=WS_O, size=4096, soff=25)
    NUM = 160; DEN = 192
    for h in range(2):
        for ks in range(4):
            k("v_mfma_f32_32x32x16_bf16 %s, %s, %s, %s" % (v(NUM + 16 * h, 16), v(G + 16 * h + 4 * ks, 4), v(64 + 16 * h + 4 * ks, 4), v(NUM + 16 * h, 16) if ks else "0"))
        for ks in range(4):
            k("v_mfma_f32_32x32x16_bf16 %s, %s, %s, %s" % (v(DEN + 16 * h, 16), v(G + 32 + 16 * h + 4 * ks, 4), v(64 + 16 * h + 4 * ks, 4), v(DEN + 16 * h, 16) if ks else "0"))
    for h in range(2):
        k("v_add_f32 v26, 0x358637bd, %s\nv_rcp_f32 v26, v26" % v(DEN + 16 * h))
        for e in range(0, 16, 2): k("v_pk_mul_f32 %s, %s, v[26:27] op_sel_hi:[1,0]" % (v(NUM + 16 * h + e, 2), v(NUM + 16 * h + e, 2)))
        for s_ in range(2):
            pack8(k, PK + 8 * h + 4 * s_, NUM + 16 * h + 8 * s_)
            k("buffer_store_dwordx4 %s, v9, s[8:11], 0 offen offset:%d%s" % (v(PK + 8 * h + 4 * s_, 4), (2 * h + s_) * 1024, ST))
    finish(k, name, idx)
    return k, (256, 256, RING + 4096, 512, 102, 256)

def g24(name, idx, which):
    k = K()
    g2 = which == 2
    KD = 1024 if g2 else 3584
    start(k, name, 256, idx)
    k("s_load_dwordx2 s[6:7], s[0:1], %d" % (A_WO if g2 else B_W2))
    k("s_load_dwordx2 s[30:31], s[0:1], %d" % (A_X if g2 else A_OUT))
    if not g2: k("s_load_dwordx2 s[40:41], s[0:1], %d" % B_B2)
    lane_setup(k)
    k("s_and_b32 s21, s2, 3\ns_lshl_b32 s21, s21, 2\ns_bfe_u32 s22, s2, 0x20003\ns_add_u32 s21, s21, s22")
    k("s_bfe_u32 s22, s2, 0x10002\ns_lshl_b32 s22, s22, 3\ns_lshr_b32 s23, s2, 5\ns_add_u32 s22, s22, s23")
    k("s_lshl_b32 s24, s21, 2\ns_add_u32 s24, s24, s20")
    pair_dma_offsets(k, [10, 11], 2048, 0, 3)
    trbase(k, 16, 128, 1024, 3, swz=17)
    k("v_lshlrev_b32 v9, 4, v1")
    k("s_waitcnt lgkmcnt(0)")
    k("s_mul_i32 s25, s24, %d" % (KD * 64)); srd(k, 8, 4, off=WS_O if g2 else WS_HH, size=KD * 64, soff=25)
    k("s_lshl_b32 s25, s22, 7"); srd(k, 12, 6, soff=25); k("s_sub_u32 s14, %d, s25" % (KD * 2048))
    k("s_mov_b32 s26, 0\ns_mov_b32 s27, 0\ns_lshl_b32 s36, s20, 11")
    k("v_lshrrev_b32 v3, 5, v1\nv_lshlrev_b32 v18, 5, v3")
    k("v_and_b32 v4, 31, v1\nv_lshlrev_b32 v19, 11, v4\nv_lshl_add_u32 v19, v3, 4, v19")
    srd(k, 16, 4, off=WS_MOD, size=24576)
    E = 96
    def extra(k):
        m1 = 2 if g2 else 5
        k("s_lshl_b32 s25, s22, 8\ns_add_u32 s28, s25, %d" % (m1 * 4096))
        for p in range(4):
            k("buffer_load_dwordx4 %s, v18, s[16:19], s28 offen offset:%d" % (v(E + 8 * p, 4), p * 64))
            k("buffer_load_dwordx4 %s, v18, s[16:19], s28 offen offset:%d" % (v(E + 8 * p + 4, 4), p * 64 + 16))
        if g2:
            k("s_add_u32 s28, s25, %d" % (4 * 4096))
            for p in range(4):
                k("buffer_load_dwordx4 %s, v18, s[16:19], s28 offen offset:%d" % (v(E + 32 + 8 * p, 4), p * 64))
                k("buffer_load_dwordx4 %s, v18, s[16:19], s28 offen offset:%d" % (v(E + 32 + 8 * p + 4, 4), p * 64 + 16))
            k("s_lshl_b32 s25, s24, 16\ns_lshl_b32 s28, s22, 7\ns_add_u32 s25, s25, s28")
            srd(k, 44, 30, soff=25, size=65536)
            for p in range(4): k("buffer_load_dwordx4 %s, v19, s[44:47], 0 offen offset:%d" % (v(E + 64 + 4 * p, 4), p * 32))
        else:
            srd(k, 44, 40, size=2048)
            k("v_lshlrev_b32 v20, 4, v3\ns_lshl_b32 s28, s22, 7")
            for p in range(4): k("buffer_load_dwordx4 %s, v20, s[44:47], s28 offen offset:%d" % (v(E + 32 + 4 * p, 4), p * 32))
            k("s_lshl_b32 s25, s24, 16\ns_lshl_b32 s28, s22, 12\ns_add_u32 s25, s25, s28")
            srd(k, 44, 4, off=WS_X1, soff=25, size=4096)
            for p in range(4): k("buffer_load_dwordx4 %s, v9, s[44:47], 0 offen offset:%d" % (v(E + 64 + 4 * p, 4), p * 1024))
    extra(k)
    ACC = 32
    c = Core(k, name, NT=2, nstages=KD // 64, R=8, XR=16 if g2 else 28, NI=2, slot_bytes=8192, PD=3, acc=ACC, wf=0, xr=128,
             v_xoff=9, s_xsrd=8, s_xk=26, v_woff=[10, 11], s_wsrd=12, s_wk=27, w_stage_stride=64 * 2048,
             v_rd=[7, 8], v_rdbase=[16, 17], rd_off=lambda j, t, q: (t % 2, j * 2048 + q * 512),
             s_a=32, s_b=33, s_c=34, s_wv=36, lds_base=0, s_cnt=35)
    c.emit()
    X = 192
    for e in range(16): unpack(k, X + 2 * e, X + 2 * e + 1, E + 64 + e)
    if g2:
        for e in range(0, 32, 2): k("v_pk_fma_f32 %s, %s, %s, %s" % (v(X + e, 2), v(ACC + e, 2), v(E + e, 2), v(X + e, 2)))
        for p in range(4): pack8(k, 64 + 4 * p, X + 8 * p)
        k("s_lshl_b32 s25, s24, 16\ns_lshl_b32 s28, s22, 12\ns_add_u32 s25, s25, s28")
        srd(k, 8, 4, off=WS_X1, soff=25, size=4096); srd(k, 12, 4, off=WS_Y, soff=25, size=4096)
        for p in range(4): k("buffer_store_dwordx4 %s, v9, s[8:11], 0 offen offset:%d%s" % (v(64 + 4 * p, 4), p * 1024, ST))
        for e in range(16): unpack(k, X + 2 * e, X + 2 * e + 1, 64 + e)
        for e in range(0, 32, 2): k("v_pk_mul_f32 %s, %s, %s" % (v(ACC + e, 2), v(X + e, 2), v(E + 32 + e, 2)))
        for p in range(4):
            pack8(k, 80 + 4 * p, ACC + 8 * p)
            k("buffer_store_dwordx4 %s, v9, s[12:15], 0 offen offset:%d%s" % (v(80 + 4 * p, 4), p * 1024, ST))
        k("v_pk_add_f32 v[22:23], %s, %s" % (v(X, 2), v(X + 2, 2)))
        for e in range(4, 32, 2): k("v_pk_add_f32 v[22:23], v[22:23], %s" % v(X + e, 2))
        k("v_add_f32 v22, v22, v23\nv_mov_b32 v23, v22\nv_permlane32_swap_b32 v23, v22\nv_add_f32 v22, v22, v23")
        k("v_mul_f32 v24, 0xbc800000, v22")
        for e in range(0, 32, 2): k("v_pk_add_f32 %s, %s, v[24:25] op_sel_hi:[1,0]" % (v(X + e, 2), v(X + e, 2)))
        k("v_pk_mul_f32 v[26:27], %s, %s" % (v(X, 2), v(X, 2)))
        for e in range(2, 32, 2): k("v_pk_fma_f32 v[26:27], %s, %s, v[26:27]" % (v(X + e, 2), v(X + e, 2)))
        k("v_add_f32 v23, v26, v27\nv_mov_b32 v26, v23\nv_permlane32_swap_b32 v26, v23\nv_add_f32 v23, v23, v26")
        srd(k, 16, 4, off=WS_STATS, size=16 * 2048 * 8)
        k("s_lshl_b32 s25, s22, 14\ns_lshl_b32 s28, s24, 8\ns_add_u32 s25, s25, s28\nv_lshlrev_b32 v21, 3, v4")
        k("s_mov_b32 exec_hi, 0")
        k("buffer_store_dwordx2 v[22:23], v21, s[16:19], s25 offen%s" % ST)
        k("s_mov_b64 exec, -1")
    else:
        B2 = 64
        for e in range(16): unpack(k, B2 + 2 * e, B2 + 2 * e + 1, E + 32 + e)
        for e in range(0, 32, 2):
            k("v_pk_add_f32 %s, %s, %s" % (v(ACC + e, 2), v(ACC + e, 2), v(B2 + e, 2)))
            k("v_pk_fma_f32 %s, %s, %s, %s" % (v(X + e, 2), v(ACC + e, 2), v(E + e, 2), v(X + e, 2)))
        k("s_lshl_b32 s25, s24, 16\ns_lshl_b32 s28, s22, 7\ns_add_u32 s25, s25, s28")
        srd(k, 8, 30, soff=25); k("s_sub_u32 s10, %d, s25" % (4 << 20))
        for p in range(4):
            pack8(k, 224 + 4 * p, X + 8 * p)
            k("buffer_store_dwordx4 %s, v19, s[8:11], 0 offen offset:%d" % (v(224 + 4 * p, 4), p * 32))
    finish(k, name, idx)
    return k, (256, 256, 98304, 512, 102, 256)

def g3(name, idx):
    k = K()
    start(k, name, 256, idx)
    k("s_load_dwordx2 s[6:7], s[0:1], %d\ns_load_dwordx2 s[30:31], s[0:1], %d" % (B_W1, B_B1))
    lane_setup(k)
    k("s_and_b32 s21, s2, 1\ns_lshl_b32 s21, s21, 3\ns_bfe_u32 s22, s2, 0x30003\ns_add_u32 s21, s21, s22")
    k("s_bfe_u32 s22, s2, 0x20001\ns_lshl_b32 s22, s22, 2\ns_lshr_b32 s23, s2, 6\ns_add_u32 s22, s22, s23")
    k("s_lshl_b32 s24, s21, 2\ns_add_u32 s24, s24, s20")
    k("s_mul_i32 s25, s20, %d" % (16 * 7168))
    for i in range(7):
        k("v_add_u32 v3, %d, v1" % (64 * i))
        k("v_mul_u32_u24 v4, 2341, v3\nv_lshrrev_b32 v4, 16, v4")
        k("v_mul_u32_u24 v5, 28, v4\nv_sub_u32 v5, v3, v5")
        k("v_mul_u32_u24 v4, 7168, v4\nv_lshl_add_u32 v4, v5, 4, v4\nv_add_u32 v4, s25, v4")
        k("v_subrev_u32 %s, %d, v4" % (v(10 + i), (i % 4) * 1024))
    trbase(k, 8, 448, 8 * 448, 3)
    k("v_lshlrev_b32 v9, 4, v1")
    k("s_waitcnt lgkmcnt(0)")
    k("s_lshl_b32 s25, s24, 16"); srd(k, 8, 4, off=WS_Y, size=65536, soff=25)
    k("s_mul_i32 s25, s22, 448"); srd(k, 12, 6, soff=25); k("s_sub_u32 s14, %d, s25" % (1024 * 7168))
    k("s_mov_b32 s26, 0\ns_mov_b32 s27, 0\ns_mul_i32 s36, s20, 7168")
    RING = 5 * 28672
    E = 160
    srd(k, 16, 4, off=WS_UT, size=4 * 2 * 3584 * 4)
    k("v_lshlrev_b32 v17, 2, v0\ns_mul_i32 s25, s22, 896")
    for j in range(8):
        k("buffer_load_dword %s, v17, s[16:19], s25 offen" % v(E + j))
        if j < 7: k("s_add_u32 s25, s25, %d" % (3584 * 4))
    srd(k, 40, 30, size=7168)
    k("v_lshlrev_b32 v18, 1, v0\ns_mul_i32 s25, s22, 448")
    k("buffer_load_ushort %s, v18, s[40:43], s25 offen" % v(E + 8))
    srd(k, 44, 4, off=WS_STATS, size=16 * 2048 * 8)
    k("v_and_b32 v3, 31, v1\nv_lshrrev_b32 v4, 5, v1\nv_lshlrev_b32 v19, 3, v3\nv_lshl_add_u32 v19, v4, 17, v19\ns_lshl_b32 s25, s24, 8")
    for j in range(8):
        k("buffer_load_dwordx2 %s, v19, s[44:47], s25 offen" % v(E + 16 + 2 * j, 2))
        if j < 7: k("s_add_u32 s25, s25, 16384")
    k("v_lshlrev_b32 v20, 5, v4\nv_add_u32 v20, %d, v20" % RING)
    ACC = 32
    c = Core(k, name, NT=7, nstages=16, R=5, XR=16, NI=7, slot_bytes=28672, PD=1, acc=ACC, wf=0, xr=128,
             v_xoff=9, s_xsrd=8, s_xk=26, v_woff=list(range(10, 17)), s_wsrd=12, s_wk=27, w_stage_stride=64 * 7168,
             v_rd=[7], v_rdbase=[8], rd_off=lambda j, t, q: (0, (16 * j + 4 * q) * 448 + 64 * t),
             s_a=32, s_b=33, s_c=34, s_wv=36, lds_base=0, s_cnt=35)
    c.emit()
    k("v_add_f32 %s, %s, %s\nv_add_f32 %s, %s, %s\nv_add_f32 %s, %s, %s" % (v(E), v(E), v(E + 2), v(E + 4), v(E + 4), v(E + 6), v(E), v(E), v(E + 4)))
    k("v_add_f32 %s, %s, %s\nv_add_f32 %s, %s, %s\nv_add_f32 %s, %s, %s" % (v(E + 1), v(E + 1), v(E + 3), v(E + 5), v(E + 5), v(E + 7), v(E + 1), v(E + 1), v(E + 5)))
    k("v_lshlrev_b32 %s, 16, %s\nv_add_f32 %s, %s, %s" % (v(E + 8), v(E + 8), v(E + 1), v(E + 1), v(E + 8)))
    k("v_add_u32 v17, %d, v17\nds_write_b32 v17, %s\nds_write_b32 v17, %s offset:1024" % (RING, v(E), v(E + 1)))
    S = E + 16
    k("v_add_f32 v22, %s, %s" % (v(S), v(S + 2)))
    for j in range(2, 8): k("v_add_f32 v22, v22, %s" % v(S + 2 * j))
    k("v_mov_b32 v23, v22\nv_permlane32_swap_b32 v23, v22\nv_add_f32 v22, v22, v23\nv_mul_f32 v22, 0x3a800000, v22")
    k("v_mov_b32 v24, 0")
    for j in range(8):
        k("v_fma_f32 v23, %s, 0x3c800000, -v22" % v(S + 2 * j) if False else "v_mul_f32 v23, 0x3c800000, %s\nv_sub_f32 v23, v23, v22" % v(S + 2 * j))
        k("v_mul_f32 v23, v23, v23\nv_fmac_f32 %s, 0x42800000, v23\nv_add_f32 v24, v24, %s" % (v(S + 2 * j + 1), v(S + 2 * j + 1)))
    k("v_mov_b32 v23, v24\nv_permlane32_swap_b32 v23, v24\nv_add_f32 v24, v24, v23")
    k("v_mov_b32 v25, 0x3727c5ac\nv_fmac_f32 v25, 0x3a800000, v24\nv_rsq_f32 v24, v25")
    k("v_mul_f32 v25, v24, v22\nv_sub_f32 v25, 0, v25")
    k("s_waitcnt lgkmcnt(0)\ns_barrier")
    k("s_mul_i32 s25, s24, %d\ns_mul_i32 s28, s22, %d\ns_add_u32 s25, s25, s28" % (224 * 1024, 14 * 1024))
    srd(k, 16, 4, off=WS_HH, soff=25, size=14 * 1024)
    k("s_mov_b32 s25, 0")
    for p in range(14):
        U = 192 + (p % 2) * 16; D = 224 + (p % 4) * 4; b = ACC + 8 * p
        k("ds_read_b128 %s, v20 offset:%d\nds_read_b128 %s, v20 offset:%d" % (v(U, 4), p * 64, v(U + 4, 4), p * 64 + 16))
        k("ds_read_b128 %s, v20 offset:%d\nds_read_b128 %s, v20 offset:%d" % (v(U + 8, 4), 1024 + p * 64, v(U + 12, 4), 1024 + p * 64 + 16))
        k("s_waitcnt lgkmcnt(0)")
        for e in range(0, 8, 2):
            k("v_pk_fma_f32 %s, %s, v[24:25], %s op_sel:[0,1,0]" % (v(U + 8 + e, 2), v(U + e, 2), v(U + 8 + e, 2)))
            k("v_pk_fma_f32 %s, %s, v[24:25], %s op_sel_hi:[1,0,1]" % (v(b + e, 2), v(b + e, 2), v(U + 8 + e, 2)))
            k("v_max_f32 %s, 0, %s\nv_max_f32 %s, 0, %s" % (v(b + e), v(b + e), v(b + e + 1), v(b + e + 1)))
            k("v_pk_mul_f32 %s, %s, %s" % (v(b + e, 2), v(b + e, 2), v(b + e, 2)))
        pack8(k, D, b)
        if p % 4 == 0 and p: k("s_add_u32 s25, s25, 4096")
        k("buffer_store_dwordx4 %s, v9, s[16:19], s25 offen offset:%d%s" % (v(D, 4), (p % 4) * 1024, ST))
    finish(k, name, idx)
    return k, (256, 256, RING + 2048, 512, 102, 256)

def build(path):
    ks = [("k0a_kernel", lambda n, i: gemv(n, i, "mod")), ("k0b_kernel", k0b), ("kut_kernel", lambda n, i: gemv(n, i, "ut")),
          ("g1_kernel", g1), ("g2_kernel", lambda n, i: g24(n, i, 2)), ("g3_kernel", g3), ("g4_kernel", lambda n, i: g24(n, i, 4))]
    hdr = []; body = []
    for i, (n, f) in enumerate(ks):
        k, (grid, blk, lds, vg, sg, acc) = f(n, i)
        hdr.append("; @launch kernel=%s grid=(%d,1,1) block=(%d,1,1) lds=%d" % (n, grid, blk, lds))
        body.append(kernel_head(n) + "\n".join(fix(k.lines)) + "\n" + kernel_desc(n, vg, sg, acc))
    open(path, "w").write("\n".join(hdr) + "\n.amdgcn_target \"amdgcn-amd-amdhsa--gfx950\"\n" + "".join(body))
if __name__ == "__main__":
    STAMPS = "stamps" in sys.argv
    build(sys.argv[1])
```
